```python
import torch

def _softmax(x, axis=-1):
    return torch.softmax(x, dim=axis)
def _gelu(x):
    return torch.nn.functional.gelu(x, approximate="tanh")
def _silu(x):
    return torch.nn.functional.silu(x)
def _sigmoid(x):
    return torch.sigmoid(x)
def _layernorm(x, axis=-1, eps=1e-5):
    m = x.mean(dim=axis, keepdim=True)
    v = x.var(dim=axis, keepdim=True, unbiased=False)
    return (x - m) / torch.sqrt(v + eps)
def _scatter_add(tgt, idx, src, axis=0):
    return tgt.clone().index_add_(axis, idx, src)
def _segment_sum(src, seg, n):
    out = torch.zeros((n,) + src.shape[1:], dtype=src.dtype)
    return out.index_add_(0, seg, src)
def _pad(x, pw):
    flat = tuple(v for pair in reversed(pw) for v in pair)
    return torch.nn.functional.pad(x, flat)

kernel_name = 'concat_heads__gqa_block_cached__sliding_block_cached__decode'

def setup_inputs():

    _w = (lambda a: (lambda t: t.to(torch.bfloat16) if t.is_floating_point() else t)(torch.as_tensor(a)))
    def _A_setup():
        B, Sq, D = 1, 1, 640
        Hq, Hkv, Sk, Dh = 32, 32, 8192, 128
        assert Hq % Hkv == 0, (Hq, Hkv)
        return {
            "x": _w((lambda *s: torch.randn(*s, dtype=torch.bfloat16) * 0.8)(B, Sq, D)),
            "k_cache": _w((lambda *s: torch.randn(*s, dtype=torch.bfloat16) * 1.6)(B, Hkv, Sk, Dh)),
            "v_cache": _w((lambda *s: torch.randn(*s, dtype=torch.bfloat16) * 0.2)(B, Hkv, Sk, Dh)),
            "wq": _w((lambda *s: torch.randn(*s, dtype=torch.bfloat16) * 1.6)(D, Hq * Dh) * (D ** -0.5)),
            "wo": _w((lambda *s: torch.randn(*s, dtype=torch.bfloat16) * 0.2)(Hq * Dh, D) * ((Hq * Dh) ** -0.5)),
        }
    _A_in = _A_setup()

    def _B_setup():
        B, Sq, D = 1, 1, 640
        Hq, Hkv, Sk, Dh = 32, 32, 8192, 128
        assert Hq % Hkv == 0, (Hq, Hkv)
        return {
            "x": _w((lambda *s: torch.randn(*s, dtype=torch.bfloat16) * 0.8)(B, Sq, D)),
            "k_cache": _w((lambda *s: torch.randn(*s, dtype=torch.bfloat16) * 1.6)(B, Hkv, Sk, Dh)),
            "v_cache": _w((lambda *s: torch.randn(*s, dtype=torch.bfloat16) * 0.2)(B, Hkv, Sk, Dh)),
            "wq": _w((lambda *s: torch.randn(*s, dtype=torch.bfloat16) * 1.6)(D, Hq * Dh) * (D ** -0.5)),
            "wo": _w((lambda *s: torch.randn(*s, dtype=torch.bfloat16) * 0.2)(Hq * Dh, D) * ((Hq * Dh) ** -0.5)),
        }
    _B_in = _B_setup()

    return {
        "A_x": _A_in["x"],
        "A_k_cache": _A_in["k_cache"],
        "A_v_cache": _A_in["v_cache"],
        "A_wq": _A_in["wq"],
        "A_wo": _A_in["wo"],
        "B_x": _B_in["x"],
        "B_k_cache": _B_in["k_cache"],
        "B_v_cache": _B_in["v_cache"],
        "B_wq": _B_in["wq"],
        "B_wo": _B_in["wo"],
    }

def reference(A_x, A_k_cache, A_v_cache, A_wq, A_wo, B_x, B_k_cache, B_v_cache, B_wq, B_wo):
    def _A_ref(x, k_cache, v_cache, wq, wo):
        B, Sq, D = x.shape
        Hq, Dh = 32, 128
        Hkv = k_cache.shape[1]
        rep = Hq // Hkv
        q = (lambda x, *d: x.permute(*d))((x @ wq).reshape(B, Sq, Hq, Dh), 0, 2, 1, 3)
        k = (lambda x, n, axis: torch.repeat_interleave(x, n, dim=axis))(k_cache, rep, axis=1)
        v = (lambda x, n, axis: torch.repeat_interleave(x, n, dim=axis))(v_cache, rep, axis=1)
        scores = torch.einsum("bhqd,bhkd->bhqk", q, k) * (Dh ** -0.5)
        p = _softmax(scores, axis=-1)
        o = torch.einsum("bhqk,bhkd->bhqd", p, v)
        return (lambda x, *d: x.permute(*d))(o, 0, 2, 1, 3).reshape(B, Sq, Hq * Dh) @ wo

    def _B_ref(x, k_cache, v_cache, wq, wo):
        B, Sq, D = x.shape
        Hq, Dh = 32, 128
        Hkv, Sk = k_cache.shape[1], k_cache.shape[2]
        W = min(4096, max(256, Sk // 4))
        rep = Hq // Hkv
        q = (lambda x, *d: x.permute(*d))((x @ wq).reshape(B, Sq, Hq, Dh), 0, 2, 1, 3)
        k = (lambda x, n, axis: torch.repeat_interleave(x, n, dim=axis))(k_cache[:, :, Sk - W:, :], rep, axis=1)
        v = (lambda x, n, axis: torch.repeat_interleave(x, n, dim=axis))(v_cache[:, :, Sk - W:, :], rep, axis=1)
        scores = torch.einsum("bhqd,bhkd->bhqk", q, k) * (Dh ** -0.5)
        p = _softmax(scores, axis=-1)
        o = torch.einsum("bhqk,bhkd->bhqd", p, v)
        return (lambda x, *d: x.permute(*d))(o, 0, 2, 1, 3).reshape(B, Sq, Hq * Dh) @ wo

    a = _A_ref(A_x, A_k_cache, A_v_cache, A_wq, A_wo)
    b = _B_ref(B_x, B_k_cache, B_v_cache, B_wq, B_wo)
    return torch.concatenate([a, b], axis=-1)
```

```python
NAME = "concat_heads__gqa_block_cached__sliding_block_cached__decode"
OUT = f"cdna_kernels/{NAME}.s"

WS_QPART = 0
WS_ML = 65536
WS_O = 65536 + 16384
WS_OUTP = WS_O + 1280 * 512
WS_SIZE = 289409536

K_BYTES = 32 * 8192 * 128 * 2

L = []
def e(s=""):
    L.append(s)

hdr = open(f"cdna_kernels/{NAME}.s.ref").read().split("\n")
for line in hdr:
    if line.startswith("; @launch"):
        break
    if line.startswith("; Override") or line.startswith("; grid=ceil"):
        continue
    e(line)
e("; @launch kernel=qproj_kernel grid=(256,1,1) block=(256,1,1) lds=8192")
e("; @launch kernel=attn_kernel grid=(1280,1,1) block=(256,1,1) lds=8448")
e("; @launch kernel=oproj_kernel grid=(320,1,1) block=(256,1,1) lds=9216")
e('.amdgcn_target "amdgcn-amd-amdhsa--gfx950"')
e(".text")

LOG2E = 1.4426950408889634
SCALE = 128 ** -0.5
import struct
def f32bits(x):
    return "0x%08x" % struct.unpack("<I", struct.pack("<f", x))[0]

e(".globl qproj_kernel")
e(".p2align 8")
e(".type qproj_kernel,@function")
e("qproj_kernel:")
e("    s_cmp_ge_u32 s2, 256")
e("    s_cbranch_scc1 L_q_done")
e("    s_lshr_b32 s3, s2, 7               ; which")
e("    s_mul_i32 s4, s3, 40")
e("    s_add_u32 s6, s0, s4")
e("    s_addc_u32 s7, s1, 0")
e("    s_load_dwordx2 s[8:9], s[6:7], 0     ; x")
e("    s_load_dwordx2 s[12:13], s[6:7], 24  ; wq")
e("    s_load_dwordx2 s[16:17], s[0:1], 96  ; ws")
e("    s_and_b32 s20, s2, 127")
e("    s_lshr_b32 s21, s20, 1             ; cs")
e("    s_and_b32 s22, s2, 1               ; half")
e("    v_and_b32 v1, 7, v0                ; c8")
e("    v_lshrrev_b32 v2, 3, v0            ; rg")
e("    s_mul_i32 s23, s22, 320")
e("    v_add_u32 v3, s23, v2              ; row0")
e("    v_lshlrev_b32 v4, 13, v3           ; row0*8192")
e("    v_lshlrev_b32 v5, 4, v1")
e("    v_add_u32 v4, v4, v5")
e("    s_lshl_b32 s24, s21, 7")
e("    v_add_u32 v4, s24, v4")
e("    v_lshlrev_b32 v5, 1, v3")
e("    s_waitcnt lgkmcnt(0)")
e("    s_mov_b32 s10, 1280")
e("    s_mov_b32 s11, 0x00020000")
e("    s_mov_b32 s14, %d" % (640 * 4096 * 2))
e("    s_mov_b32 s15, 0x00020000")
e("    s_mov_b32 s18, %d" % WS_SIZE)
e("    s_mov_b32 s19, 0x00020000")
for i in range(10):
    e("    s_mov_b32 s%d, %d" % (30 + i, i * 262144))
for i in range(10):
    e("    buffer_load_dwordx4 v[%d:%d], v4, s[12:15], s%d offen" % (16 + 4 * i, 19 + 4 * i, 30 + i))
for i in range(10):
    e("    buffer_load_ushort v%d, v5, s[8:11], 0 offen offset:%d" % (60 + i, 64 * i))
for j in range(8):
    e("    v_mov_b32 v%d, 0" % (8 + j))
for i in range(10):
    e("    s_waitcnt vmcnt(%d)" % (9 - i))
    e("    v_lshlrev_b32 v70, 16, v%d" % (60 + i))
    for j in range(4):
        w = 16 + 4 * i + j
        e("    v_lshlrev_b32 v71, 16, v%d" % w)
        e("    v_and_b32 v72, 0xffff0000, v%d" % w)
        e("    v_fmac_f32 v%d, v71, v70" % (8 + 2 * j))
        e("    v_fmac_f32 v%d, v72, v70" % (9 + 2 * j))
e("    v_lshlrev_b32 v6, 8, v2")
e("    v_lshlrev_b32 v7, 5, v1")
e("    v_add_u32 v6, v6, v7")
e("    ds_write_b128 v6, v[8:11]")
e("    ds_write_b128 v6, v[12:15] offset:16")
e("    s_waitcnt lgkmcnt(0)")
e("    s_barrier")
e("    v_cmp_gt_u32 vcc, 64, v0")
e("    s_and_saveexec_b64 s[26:27], vcc")
e("    s_cbranch_execz L_q_done")
e("    v_lshlrev_b32 v6, 2, v0")
for r in range(32):
    e("    ds_read_b32 v%d, v6 offset:%d" % (16 + r, r * 256))
e("    s_waitcnt lgkmcnt(0)")
for r in range(1, 32):
    e("    v_add_f32 v16, v16, v%d" % (16 + r))
e("    s_lshl_b32 s25, s3, 1")
e("    s_add_u32 s25, s25, s22")
e("    s_lshl_b32 s25, s25, 14")
e("    s_lshl_b32 s28, s21, 8")
e("    s_add_u32 s25, s25, s28")
e("    v_add_u32 v6, s25, v6")
e("    buffer_store_dword v16, v6, s[16:19], 0 offen")
e("L_q_done:")
e("    s_endpgm")

e(".globl attn_kernel")
e(".p2align 8")
e(".type attn_kernel,@function")
e("attn_kernel:")
e("    s_cmp_ge_u32 s2, 1280")
e("    s_cbranch_scc1 L_a_done")
e("    s_cmp_ge_u32 s2, 1024")
e("    s_cselect_b32 s3, 1, 0             ; which")
e("    s_mul_i32 s4, s3, 40")
e("    s_add_u32 s6, s0, s4")
e("    s_addc_u32 s7, s1, 0")
e("    s_load_dwordx4 s[8:11], s[6:7], 8")
e("    s_load_dwordx2 s[16:17], s[0:1], 96  ; ws")
e("    s_lshr_b32 s20, s2, 5              ; A head")
e("    s_and_b32 s21, s2, 31")
e("    s_lshl_b32 s21, s21, 8             ; A key0")
e("    s_sub_u32 s22, s2, 1024")
e("    s_lshr_b32 s23, s22, 3             ; B head")
e("    s_and_b32 s24, s22, 7")
e("    s_lshl_b32 s24, s24, 8")
e("    s_add_u32 s24, s24, 6144           ; B key0")
e("    s_cmp_eq_u32 s3, 1")
e("    s_cselect_b32 s20, s23, s20        ; head")
e("    s_cselect_b32 s21, s24, s21        ; key0")
e("    v_and_b32 v1, 63, v0               ; lane")
e("    v_lshrrev_b32 v2, 6, v0            ; wave")
e("    s_lshl_b32 s25, s20, 21")
e("    s_lshl_b32 s26, s21, 8")
e("    s_add_u32 s25, s25, s26")
e("    v_lshlrev_b32 v3, 4, v1")
e("    v_lshlrev_b32 v4, 14, v2           ; wave*64*256")
e("    v_add_u32 v3, v3, v4")
e("    v_add_u32 v3, s25, v3              ; voffset")
e("    v_and_b32 v5, 15, v1")
e("    v_lshlrev_b32 v5, 5, v5")
e("    s_lshl_b32 s27, s3, 15")
e("    s_lshl_b32 s28, s20, 9")
e("    s_add_u32 s27, s27, s28")
e("    v_add_u32 v5, s27, v5")
e("    s_waitcnt lgkmcnt(0)")
e("    s_mov_b32 s12, s10")
e("    s_mov_b32 s13, s11")
e("    s_mov_b32 s14, %d" % K_BYTES)
e("    s_mov_b32 s15, 0x00020000")
e("    s_mov_b32 s10, %d" % K_BYTES)
e("    s_mov_b32 s11, 0x00020000")
e("    s_mov_b32 s18, %d" % WS_SIZE)
e("    s_mov_b32 s19, 0x00020000")
e("    buffer_load_dwordx4 v[8:11], v5, s[16:19], 0 offen")
e("    buffer_load_dwordx4 v[12:15], v5, s[16:19], 0 offen offset:16")
e("    s_movk_i32 s29, 0x4000")
e("    buffer_load_dwordx4 v[16:19], v5, s[16:19], s29 offen")
e("    buffer_load_dwordx4 v[20:23], v5, s[16:19], s29 offen offset:16")
KB = 32
for i in range(16):
    o = i * 1024
    if o < 4096:
        e("    buffer_load_dwordx4 v[%d:%d], v3, s[8:11], 0 offen offset:%d" % (KB + 4 * i, KB + 4 * i + 3, o))
    else:
        e("    buffer_load_dwordx4 v[%d:%d], v3, s[8:11], s%d offen offset:%d" % (KB + 4 * i, KB + 4 * i + 3, 30 + o // 4096, o % 4096))
    if i == 0:
        for k in range(1, 4):
            e("    s_movk_i32 s%d, %d" % (30 + k, 4096 * k))
e("    s_waitcnt vmcnt(16)")
for j in range(8):
    e("    v_add_f32 v%d, v%d, v%d" % (8 + j, 8 + j, 16 + j))
for j in range(4):
    e("    v_cvt_pk_bf16_f32 v%d, v%d, v%d" % (24 + j, 8 + 2 * j, 9 + 2 * j))
VB = 96
for i in range(16):
    o = i * 1024
    if o < 4096:
        e("    buffer_load_dwordx4 v[%d:%d], v3, s[12:15], 0 offen offset:%d" % (VB + 4 * i, VB + 4 * i + 3, o))
    else:
        e("    buffer_load_dwordx4 v[%d:%d], v3, s[12:15], s%d offen offset:%d" % (VB + 4 * i, VB + 4 * i + 3, 30 + o // 4096, o % 4096))
for i in range(16):
    e("    s_waitcnt vmcnt(%d)" % (16 + 15 - i))
    e("    v_mov_b32 v%d, 0" % (8 + i))
    for j in range(4):
        e("    v_dot2c_f32_bf16 v%d, v%d, v%d" % (8 + i, KB + 4 * i + j, 24 + j))
for sh in (8, 4, 2, 1):
    for i in range(16):
        e("    v_add_f32_dpp v%d, v%d, v%d row_ror:%d row_mask:0xf bank_mask:0xf" % (8 + i, 8 + i, 8 + i, sh))
e("    s_mov_b32 s34, %s" % f32bits(SCALE))
for i in range(0, 16, 2):
    e("    v_cvt_pk_bf16_f32 v%d, v%d, v%d" % (KB + i, 8 + i, 9 + i))
    e("    v_and_b32 v%d, 0xffff0000, v%d" % (KB + i + 1, KB + i))
    e("    v_lshlrev_b32 v%d, 16, v%d" % (KB + i, KB + i))
for i in range(16):
    e("    v_mul_f32 v%d, s34, v%d" % (KB + i, KB + i))
for i in range(0, 16, 2):
    e("    v_cvt_pk_bf16_f32 v%d, v%d, v%d" % (8 + i, KB + i, KB + i + 1))
    e("    v_and_b32 v%d, 0xffff0000, v%d" % (9 + i, 8 + i))
    e("    v_lshlrev_b32 v%d, 16, v%d" % (8 + i, 8 + i))
e("    v_max_f32 v28, v8, v9")
for i in range(2, 16):
    e("    v_max_f32 v28, v28, v%d" % (8 + i))
e("    s_mov_b32 s35, %s" % f32bits(LOG2E))
for i in range(16):
    e("    v_sub_f32 v%d, v%d, v28" % (8 + i, 8 + i))
for i in range(16):
    e("    v_mul_f32 v%d, s35, v%d" % (8 + i, 8 + i))
for i in range(16):
    e("    v_exp_f32 v%d, v%d" % (8 + i, 8 + i))
e("    v_add_f32 v29, v8, v9")
for i in range(2, 16):
    e("    v_add_f32 v29, v29, v%d" % (8 + i))
for j in range(8):
    e("    v_mov_b32 v%d, 0" % (32 + j))
for i in range(16):
    e("    s_waitcnt vmcnt(%d)" % (15 - i))
    for j in range(4):
        w = VB + 4 * i + j
        e("    v_lshlrev_b32 v40, 16, v%d" % w)
        e("    v_and_b32 v41, 0xffff0000, v%d" % w)
        e("    v_fmac_f32 v%d, v40, v%d" % (32 + 2 * j, 8 + i))
        e("    v_fmac_f32 v%d, v41, v%d" % (33 + 2 * j, 8 + i))
e("    v_lshrrev_b32 v6, 4, v0")
e("    v_lshlrev_b32 v7, 9, v6")
e("    v_and_b32 v42, 15, v0")
e("    v_lshlrev_b32 v42, 5, v42")
e("    v_add_u32 v7, v7, v42")
e("    ds_write_b128 v7, v[32:35]")
e("    ds_write_b128 v7, v[36:39] offset:16")
e("    v_lshlrev_b32 v43, 3, v6")
e("    ds_write_b64 v43, v[28:29] offset:8192")
e("    s_waitcnt lgkmcnt(0)")
e("    s_barrier")
e("    v_cmp_gt_u32 vcc, 128, v0")
e("    s_and_saveexec_b64 s[26:27], vcc")
e("    s_cbranch_execz L_a_done")
e("    v_mov_b32 v44, 0")
for g in range(0, 16, 2):
    e("    ds_read_b128 v[%d:%d], v44 offset:%d" % (48 + 2 * g, 51 + 2 * g, 8192 + g * 8))
e("    v_lshlrev_b32 v45, 2, v0")
for g in range(16):
    e("    ds_read_b32 v%d, v45 offset:%d" % (8 + g, g * 512))
e("    s_waitcnt lgkmcnt(0)")
e("    v_max_f32 v28, v48, v50")
for g in range(2, 16):
    e("    v_max_f32 v28, v28, v%d" % (48 + 2 * g))
for g in range(16):
    e("    v_sub_f32 v%d, v%d, v28" % (48 + 2 * g, 48 + 2 * g))
    e("    v_mul_f32 v%d, s35, v%d" % (48 + 2 * g, 48 + 2 * g))
    e("    v_exp_f32 v%d, v%d" % (48 + 2 * g, 48 + 2 * g))
e("    v_mov_b32 v29, 0")
e("    v_mov_b32 v30, 0")
for g in range(16):
    e("    v_fmac_f32 v29, v%d, v%d" % (48 + 2 * g, 49 + 2 * g))
    e("    v_fmac_f32 v30, v%d, v%d" % (48 + 2 * g, 8 + g))
e("    s_lshl_b32 s36, s2, 9")
e("    s_add_u32 s36, s36, %d" % WS_O)
e("    buffer_store_dword v30, v45, s[16:19], s36 offen")
e("    v_cmp_eq_u32 vcc, 0, v0")
e("    s_and_saveexec_b64 s[26:27], vcc")
e("    s_cbranch_execz L_a_done")
e("    s_lshl_b32 s36, s2, 3")
e("    s_add_u32 s36, s36, %d" % WS_ML)
e("    buffer_store_dwordx2 v[28:29], v44, s[16:19], s36 offen")
e("L_a_done:")
e("    s_endpgm")

e(".globl oproj_kernel")
e(".p2align 8")
e(".type oproj_kernel,@function")
e("oproj_kernel:")
e("    s_cmp_ge_u32 s2, 320")
e("    s_cbranch_scc1 L_o_done")
e("    s_cmp_ge_u32 s2, 160")
e("    s_cselect_b32 s3, 1, 0             ; which")
e("    s_mul_i32 s4, s3, 160")
e("    s_sub_u32 s20, s2, s4              ; rem")
e("    s_mul_i32 s21, s20, 205")
e("    s_lshr_b32 s21, s21, 11            ; ks")
e("    s_mul_i32 s22, s21, 10")
e("    s_sub_u32 s22, s20, s22            ; slice")
e("    s_mul_i32 s4, s3, 40")
e("    s_add_u32 s6, s0, s4")
e("    s_addc_u32 s7, s1, 0")
e("    s_load_dwordx2 s[8:9], s[6:7], 32    ; wo")
e("    s_load_dwordx2 s[12:13], s[0:1], 80  ; out")
e("    s_load_dwordx2 s[40:41], s[0:1], 88  ; debug")
e("    s_load_dwordx2 s[16:17], s[0:1], 96  ; ws")
e("    v_lshrrev_b32 v2, 7, v0            ; head-in-pair")
e("    v_and_b32 v3, 127, v0              ; d")
e("    s_lshl_b32 s23, s21, 1")
e("    v_add_u32 v4, s23, v2              ; head")
e("    s_waitcnt lgkmcnt(0)")
e("    s_mov_b32 s10, %d" % (4096 * 640 * 2))
e("    s_mov_b32 s11, 0x00020000")
e("    s_mov_b32 s14, 2560")
e("    s_mov_b32 s15, 0x00020000")
e("    s_mov_b32 s18, %d" % WS_SIZE)
e("    s_mov_b32 s19, 0x00020000")
e("    s_mov_b32 s42, 256")
e("    s_mov_b32 s43, 0x00020000")
e("    s_mov_b32 s35, %s" % f32bits(LOG2E))
e("    s_cmp_eq_u32 s3, 1")
e("    s_cbranch_scc1 L_o_B")
for which, nsp, base in ((0, 32, 0), (1, 8, 1024)):
    if which == 1:
        e("L_o_B:")
    e("    v_mul_u32_u24 v5, %d, v4" % nsp)
    e("    v_lshlrev_b32 v6, 3, v5")
    e("    v_lshlrev_b32 v7, 9, v5")
    e("    v_lshlrev_b32 v1, 2, v3")
    e("    v_add_u32 v7, v7, v1")
    e("    s_mov_b32 s24, %d" % (WS_ML + base * 8))
    e("    s_mov_b32 s25, %d" % (WS_O + base * 512))
    for s in range(0, nsp, 2):
        e("    buffer_load_dwordx4 v[%d:%d], v6, s[16:19], s24 offen offset:%d" % (16 + 2 * s, 19 + 2 * s, s * 8))
    for s in range(nsp):
        if s * 512 < 4096:
            e("    buffer_load_dword v%d, v7, s[16:19], s25 offen offset:%d" % (80 + s, s * 512))
        else:
            if (s * 512) % 4096 == 0:
                e("    s_add_u32 s25, s25, 4096")
            e("    buffer_load_dword v%d, v7, s[16:19], s25 offen offset:%d" % (80 + s, (s * 512) % 4096))
    e("    s_waitcnt vmcnt(%d)" % nsp)
    e("    v_max_f32 v8, v16, v18")
    for s in range(2, nsp):
        e("    v_max_f32 v8, v8, v%d" % (16 + 2 * s))
    for s in range(nsp):
        e("    v_sub_f32 v%d, v%d, v8" % (16 + 2 * s, 16 + 2 * s))
        e("    v_mul_f32 v%d, s35, v%d" % (16 + 2 * s, 16 + 2 * s))
        e("    v_exp_f32 v%d, v%d" % (16 + 2 * s, 16 + 2 * s))
    e("    v_mov_b32 v9, 0")
    e("    v_mov_b32 v10, 0")
    e("    s_waitcnt vmcnt(0)")
    for s in range(nsp):
        e("    v_fmac_f32 v9, v%d, v%d" % (16 + 2 * s, 17 + 2 * s))
        e("    v_fmac_f32 v10, v%d, v%d" % (16 + 2 * s, 80 + s))
    if which == 0:
        e("    s_branch L_o_common")
e("L_o_common:")
e("    v_rcp_f32 v9, v9")
e("    s_nop 1")
e("    v_mul_f32 v10, v10, v9")
e("    v_cvt_pk_bf16_f32 v10, v10, v10")
e("    v_lshlrev_b32 v10, 16, v10")
e("    v_lshlrev_b32 v1, 2, v0")
e("    ds_write_b32 v1, v10 offset:8192")
e("    s_waitcnt lgkmcnt(0)")
e("    s_barrier")
e("    v_and_b32 v1, 7, v0                ; c8")
e("    v_lshrrev_b32 v2, 3, v0            ; rg")
e("    v_mul_u32_u24 v4, 1280, v2")
e("    v_lshlrev_b32 v5, 4, v1")
e("    v_add_u32 v4, v4, v5")
e("    s_mul_i32 s24, s21, %d" % (256 * 1280))
e("    s_lshl_b32 s25, s22, 7")
e("    s_add_u32 s24, s24, s25")
e("    v_add_u32 v4, s24, v4")
for i in range(8):
    e("    s_mov_b32 s%d, %d" % (44 + i, i * 40960))
for i in range(8):
    e("    buffer_load_dwordx4 v[%d:%d], v4, s[8:11], s%d offen" % (16 + 4 * i, 19 + 4 * i, 44 + i))
e("    v_lshlrev_b32 v6, 2, v2")
for i in range(8):
    e("    ds_read_b32 v%d, v6 offset:%d" % (60 + i, 8192 + i * 128))
for j in range(8):
    e("    v_mov_b32 v%d, 0" % (8 + j))
e("    s_waitcnt lgkmcnt(0)")
for i in range(8):
    e("    s_waitcnt vmcnt(%d)" % (7 - i))
    for j in range(4):
        w = 16 + 4 * i + j
        e("    v_lshlrev_b32 v71, 16, v%d" % w)
        e("    v_and_b32 v72, 0xffff0000, v%d" % w)
        e("    v_fmac_f32 v%d, v71, v%d" % (8 + 2 * j, 60 + i))
        e("    v_fmac_f32 v%d, v72, v%d" % (9 + 2 * j, 60 + i))
e("    v_lshlrev_b32 v6, 8, v2")
e("    v_lshlrev_b32 v7, 5, v1")
e("    v_add_u32 v6, v6, v7")
e("    ds_write_b128 v6, v[8:11]")
e("    ds_write_b128 v6, v[12:15] offset:16")
e("    s_waitcnt lgkmcnt(0)")
e("    s_barrier")
e("    v_cmp_gt_u32 vcc, 64, v0")
e("    s_and_saveexec_b64 s[26:27], vcc")
e("    s_cbranch_execz L_o_done")
e("    v_lshlrev_b32 v6, 2, v0")
for r in range(32):
    e("    ds_read_b32 v%d, v6 offset:%d" % (16 + r, r * 256))
e("    s_waitcnt lgkmcnt(0)")
for r in range(1, 32):
    e("    v_add_f32 v16, v16, v%d" % (16 + r))
e("    s_mul_i32 s24, s3, 10")
e("    s_add_u32 s24, s24, s22            ; which*10+slice")
e("    s_lshl_b32 s25, s24, 12")
e("    s_add_u32 s25, s25, %d" % WS_OUTP)
e("    s_lshl_b32 s28, s21, 8")
e("    s_add_u32 s28, s28, s25")
e("    buffer_store_dword v16, v6, s[16:19], s28 offen sc1")
e("    s_waitcnt vmcnt(0)")
e("    v_mov_b32 v8, 1")
e("    s_lshl_b32 s29, s24, 2")
e("    v_mov_b32 v9, s29")
e("    v_cmp_eq_u32 vcc, 0, v0")
e("    s_and_saveexec_b64 s[30:31], vcc")
e("    buffer_atomic_add v8, v9, s[40:43], 0 offen sc0")
e("    s_waitcnt vmcnt(0)")
e("    s_mov_b64 exec, s[30:31]")
e("    v_readfirstlane_b32 s29, v8")
e("    s_cmp_lg_u32 s29, 15")
e("    s_cbranch_scc1 L_o_done")
for k in range(16):
    e("    buffer_load_dword v%d, v6, s[16:19], s25 offen offset:%d sc1" % (16 + k, k * 256))
e("    s_waitcnt vmcnt(0)")
for k in range(1, 16):
    e("    v_add_f32 v16, v16, v%d" % (16 + k))
e("    v_cvt_pk_bf16_f32 v16, v16, v16")
e("    s_mul_i32 s24, s3, 1280")
e("    s_lshl_b32 s28, s22, 7")
e("    s_add_u32 s24, s24, s28")
e("    v_lshlrev_b32 v7, 1, v0")
e("    buffer_store_short v16, v7, s[12:15], s24 offen")
e("L_o_done:")
e("    s_endpgm")

e('.section .rodata,"a"')
for k, nv in (("qproj_kernel", 80), ("attn_kernel", 160), ("oproj_kernel", 112)):
    e(".p2align 6")
    e(".amdhsa_kernel %s" % k)
    e("  .amdhsa_next_free_vgpr %d" % nv)
    e("  .amdhsa_next_free_sgpr 64")
    e("  .amdhsa_accum_offset %d" % nv)
    e("  .amdhsa_group_segment_fixed_size 0")
    e("  .amdhsa_kernarg_size 104")
    e("  .amdhsa_user_sgpr_count 2")
    e("  .amdhsa_user_sgpr_kernarg_segment_ptr 1")
    e("  .amdhsa_system_sgpr_workgroup_id_x 1")
    e(".end_amdhsa_kernel")

open(OUT, "w").write("\n".join(L) + "\n")
print("wrote", OUT, len(L), "lines")
```

```python
import struct, sys
NAME = "concat_heads__gqa_block_cached__sliding_block_cached__decode"
OUT = f"cdna_kernels/{NAME}.s"
POLL_LIMIT = int(sys.argv[1]) if len(sys.argv) > 1 else 400

WS_QPART = 0
WS_ML = 131072
WS_O = WS_ML + 16384
WS_OUTP = WS_O + 1280 * 512
WS_SIZE = 289409536
K_BYTES = 32 * 8192 * 128 * 2
L = []
def e(s=""):
    L.append(s)
def f32bits(x):
    return "0x%08x" % struct.unpack("<I", struct.pack("<f", x))[0]
LOG2E = 1.4426950408889634
SCALE = 128 ** -0.5

for line in open(f"cdna_kernels/{NAME}.s.ref").read().split("\n"):
    if line.startswith("; @launch"):
        break
    if line.startswith("; Override") or line.startswith("; grid=ceil"):
        continue
    e(line)
e("; @launch kernel=attn_kernel grid=(1280,1,1) block=(256,1,1) lds=8704")
e("; @launch kernel=oproj_kernel grid=(320,1,1) block=(256,1,1) lds=9216")
e('.amdgcn_target "amdgcn-amd-amdhsa--gfx950"')
e(".text")

e(".globl attn_kernel")
e(".p2align 8")
e(".type attn_kernel,@function")
e("attn_kernel:")
e("    s_cmp_ge_u32 s2, 1280")
e("    s_cbranch_scc1 L_a_done")
e("    s_cmp_ge_u32 s2, 1024")
e("    s_cselect_b32 s3, 1, 0             ; which")
e("    s_mul_i32 s4, s3, 40")
e("    s_add_u32 s6, s0, s4")
e("    s_addc_u32 s7, s1, 0")
e("    s_load_dwordx4 s[8:11], s[6:7], 8")
e("    s_load_dwordx2 s[44:45], s[6:7], 0   ; x")
e("    s_load_dwordx2 s[48:49], s[6:7], 24  ; wq")
e("    s_load_dwordx2 s[40:41], s[0:1], 88  ; debug")
e("    s_load_dwordx2 s[16:17], s[0:1], 96  ; ws")
e("    s_lshr_b32 s20, s2, 5              ; A head")
e("    s_and_b32 s21, s2, 31              ; A split")
e("    s_sub_u32 s22, s2, 1024")
e("    s_lshr_b32 s23, s22, 3             ; B head")
e("    s_and_b32 s24, s22, 7              ; B split")
e("    s_cmp_eq_u32 s3, 1")
e("    s_cselect_b32 s20, s23, s20        ; head")
e("    s_cselect_b32 s37, s24, s21        ; split")
e("    s_lshl_b32 s21, s37, 8")
e("    s_mul_i32 s24, s3, 6144")
e("    s_add_u32 s21, s21, s24            ; key0")
e("    v_and_b32 v1, 63, v0               ; lane")
e("    v_lshrrev_b32 v2, 6, v0            ; wave")
e("    s_lshl_b32 s25, s20, 21")
e("    s_lshl_b32 s26, s21, 8")
e("    s_add_u32 s25, s25, s26")
e("    v_lshlrev_b32 v3, 4, v1")
e("    v_lshlrev_b32 v4, 14, v2")
e("    v_add_u32 v3, v3, v4")
e("    v_add_u32 v3, s25, v3              ; K/V voffset")
e("    v_readfirstlane_b32 s38, v2")
e("    s_waitcnt lgkmcnt(0)")
e("    s_mov_b32 s12, s10")
e("    s_mov_b32 s13, s11")
e("    s_mov_b32 s14, %d" % K_BYTES)
e("    s_mov_b32 s15, 0x00020000")
e("    s_mov_b32 s10, %d" % K_BYTES)
e("    s_mov_b32 s11, 0x00020000")
e("    s_mov_b32 s18, %d" % WS_SIZE)
e("    s_mov_b32 s19, 0x00020000")
e("    s_mov_b32 s42, 256")
e("    s_mov_b32 s43, 0x00020000")
e("    s_mov_b32 s46, 1280")
e("    s_mov_b32 s47, 0x00020000")
e("    s_mov_b32 s50, %d" % (640 * 4096 * 2))
e("    s_mov_b32 s51, 0x00020000")
for k in range(1, 4):
    e("    s_movk_i32 s%d, %d" % (30 + k, 4096 * k))
e("    s_mov_b32 s34, %s" % f32bits(SCALE))
e("    s_mov_b32 s35, %s" % f32bits(LOG2E))
e("    s_lshl_b32 s27, s3, 16")
e("    s_lshl_b32 s28, s20, 9")
e("    s_add_u32 s27, s27, s28")
e("    s_lshl_b32 s39, s3, 5")
e("    s_add_u32 s39, s39, s20")
e("    s_lshl_b32 s39, s39, 2")
e("    s_cmp_ge_u32 s37, 4")
e("    s_cbranch_scc1 L_a_noprod")
e("    v_and_b32 v4, 15, v0               ; lane16")
e("    v_lshrrev_b32 v5, 4, v0            ; rg 0..15")
e("    s_mul_i32 s52, s37, 160")
e("    v_add_u32 v6, s52, v5              ; row0")
e("    v_lshlrev_b32 v7, 13, v6")
e("    v_lshlrev_b32 v28, 4, v4")
e("    v_add_u32 v7, v7, v28")
e("    s_lshl_b32 s53, s20, 8")
e("    v_add_u32 v7, s53, v7")
e("    v_lshlrev_b32 v6, 1, v6")
e("    s_mov_b32 s54, 0")
for i in range(10):
    e("    buffer_load_dwordx4 v[%d:%d], v7, s[48:51], s54 offen nt" % (32 + 4 * i, 35 + 4 * i))
    if i < 9:
        e("    s_add_u32 s54, s54, 131072")
for i in range(10):
    e("    buffer_load_ushort v%d, v6, s[44:47], 0 offen offset:%d" % (72 + i, 32 * i))
for j in range(8):
    e("    v_mov_b32 v%d, 0" % (8 + j))
for i in range(10):
    e("    s_waitcnt vmcnt(%d)" % (9 - i))
    e("    v_lshlrev_b32 v82, 16, v%d" % (72 + i))
    for j in range(4):
        w = 32 + 4 * i + j
        e("    v_lshlrev_b32 v83, 16, v%d" % w)
        e("    v_and_b32 v84, 0xffff0000, v%d" % w)
        e("    v_fmac_f32 v%d, v83, v82" % (8 + 2 * j))
        e("    v_fmac_f32 v%d, v84, v82" % (9 + 2 * j))
e("    v_lshlrev_b32 v6, 9, v5")
e("    v_lshlrev_b32 v7, 5, v4")
e("    v_add_u32 v6, v6, v7")
e("    ds_write_b128 v6, v[8:11]")
e("    ds_write_b128 v6, v[12:15] offset:16")
e("    s_waitcnt lgkmcnt(0)")
e("    s_barrier")
e("    s_cmp_lg_u32 s38, 0")
e("    s_cbranch_scc1 L_a_noprod")
e("    v_lshlrev_b32 v6, 3, v1")
for r in range(16):
    e("    ds_read_b64 v[%d:%d], v6 offset:%d" % (32 + 2 * r, 33 + 2 * r, r * 512))
e("    s_waitcnt lgkmcnt(0)")
for r in range(1, 16):
    e("    v_add_f32 v32, v32, v%d" % (32 + 2 * r))
    e("    v_add_f32 v33, v33, v%d" % (33 + 2 * r))
e("    s_lshl_b32 s52, s37, 14")
e("    s_add_u32 s52, s52, s27")
e("    buffer_store_dwordx2 v[32:33], v6, s[16:19], s52 offen sc1")
e("    s_waitcnt vmcnt(0)")
e("    v_mov_b32 v4, 1")
e("    v_mov_b32 v5, s39")
e("    v_cmp_eq_u32 vcc, 0, v1")
e("    s_and_saveexec_b64 s[56:57], vcc")
e("    buffer_atomic_add v4, v5, s[40:43], 0 offen sc1")
e("    s_mov_b64 exec, s[56:57]")
e("L_a_noprod:")
e("    s_cmp_lg_u32 s38, 0")
e("    s_cbranch_scc1 L_a_kload_early")
e("    v_mov_b32 v5, s39")
e("    s_mov_b32 s55, 0")
e("L_a_poll:")
e("    buffer_load_dword v4, v5, s[40:43], 0 offen sc1")
e("    s_waitcnt vmcnt(0)")
e("    v_readfirstlane_b32 s52, v4")
e("    s_cmp_ge_u32 s52, 4")
e("    s_cbranch_scc1 L_a_qready")
e("    s_sleep 4")
e("    s_add_u32 s55, s55, 1")
e("    s_cmp_lt_u32 s55, %d" % POLL_LIMIT)
e("    s_cbranch_scc1 L_a_poll")
e("    v_and_b32 v4, 15, v1")
e("    v_lshrrev_b32 v5, 4, v1")
e("    v_lshlrev_b32 v7, 13, v5")
e("    v_lshlrev_b32 v28, 4, v4")
e("    v_add_u32 v7, v7, v28")
e("    s_lshl_b32 s53, s20, 8")
e("    v_add_u32 v7, s53, v7")
e("    v_lshlrev_b32 v6, 1, v5")
for j in range(8):
    e("    v_mov_b32 v%d, 0" % (8 + j))
e("    s_mov_b32 s54, 0")
e("    s_mov_b32 s55, 0                   ; x soffset")
e("L_a_fb:")
e("    s_mov_b32 s52, s54")
for i in range(8):
    e("    buffer_load_dwordx4 v[%d:%d], v7, s[48:51], s52 offen" % (32 + 4 * i, 35 + 4 * i))
    e("    buffer_load_ushort v%d, v6, s[44:47], s55 offen offset:%d" % (72 + i, 8 * i))
    if i < 7:
        e("    s_add_u32 s52, s52, 32768")
e("    s_waitcnt vmcnt(0)")
for i in range(8):
    e("    v_lshlrev_b32 v82, 16, v%d" % (72 + i))
    for j in range(4):
        w = 32 + 4 * i + j
        e("    v_lshlrev_b32 v83, 16, v%d" % w)
        e("    v_and_b32 v84, 0xffff0000, v%d" % w)
        e("    v_fmac_f32 v%d, v83, v82" % (8 + 2 * j))
        e("    v_fmac_f32 v%d, v84, v82" % (9 + 2 * j))
e("    s_add_u32 s54, s54, 262144")
e("    s_add_u32 s55, s55, 64")
e("    s_cmp_lt_u32 s55, 1280")
e("    s_cbranch_scc1 L_a_fb")
e("    v_lshlrev_b32 v6, 5, v1            ; lane*32")
e("    ds_write_b128 v6, v[8:11] offset:4096")
e("    ds_write_b128 v6, v[12:15] offset:4112")
e("    s_waitcnt lgkmcnt(0)")
e("    v_lshlrev_b32 v6, 5, v4")
for g in range(1, 4):
    e("    ds_read_b128 v[%d:%d], v6 offset:%d" % (32 + 8 * g, 35 + 8 * g, 4096 + g * 512))
    e("    ds_read_b128 v[%d:%d], v6 offset:%d" % (36 + 8 * g, 39 + 8 * g, 4096 + g * 512 + 16))
e("    ds_read_b128 v[8:11], v6 offset:4096")
e("    ds_read_b128 v[12:15], v6 offset:4112")
e("    s_waitcnt lgkmcnt(0)")
for g in range(1, 4):
    for j in range(8):
        e("    v_add_f32 v%d, v%d, v%d" % (8 + j, 8 + j, 32 + 8 * g + j))
e("    s_branch L_a_qcvt")
e("L_a_qready:")
e("    v_and_b32 v4, 15, v1")
e("    v_lshlrev_b32 v4, 5, v4")
e("    s_mov_b32 s52, s27")
for c in range(4):
    e("    buffer_load_dwordx4 v[%d:%d], v4, s[16:19], s52 offen sc1" % (8 + 8 * c, 11 + 8 * c))
    e("    buffer_load_dwordx4 v[%d:%d], v4, s[16:19], s52 offen offset:16 sc1" % (12 + 8 * c, 15 + 8 * c))
    if c < 3:
        e("    s_add_u32 s52, s52, 16384")
e("    s_waitcnt vmcnt(0)")
for j in range(8):
    e("    v_add_f32 v%d, v%d, v%d" % (8 + j, 8 + j, 16 + j))
    e("    v_add_f32 v%d, v%d, v%d" % (24 + j, 24 + j, 32 + j))
for j in range(8):
    e("    v_add_f32 v%d, v%d, v%d" % (8 + j, 8 + j, 24 + j))
e("L_a_qcvt:")
for j in range(4):
    e("    v_cvt_pk_bf16_f32 v%d, v%d, v%d" % (24 + j, 8 + 2 * j, 9 + 2 * j))
e("    v_and_b32 v4, 15, v1")
e("    v_lshlrev_b32 v4, 4, v4")
e("    ds_write_b128 v4, v[24:27] offset:8448")
e("    s_waitcnt lgkmcnt(0)")
e("    s_barrier")
e("L_a_kload_early:")
KB = 32
for i in range(16):
    o = i * 1024
    so = "0" if o < 4096 else "s%d" % (30 + o // 4096)
    e("    buffer_load_dwordx4 v[%d:%d], v3, s[8:11], %s offen offset:%d nt" % (KB + 4 * i, KB + 4 * i + 3, so, o % 4096))
e("    s_cmp_eq_u32 s38, 0")
e("    s_cbranch_scc1 L_a_q_have")
e("    s_barrier")
e("    v_and_b32 v4, 15, v1")
e("    v_lshlrev_b32 v4, 4, v4")
e("    ds_read_b128 v[24:27], v4 offset:8448")
e("    s_waitcnt lgkmcnt(0)")
e("L_a_q_have:")
for i in range(16):
    e("    s_waitcnt vmcnt(%d)" % (15 - i))
    e("    v_mov_b32 v%d, 0" % (8 + i))
    for j in range(4):
        e("    v_dot2c_f32_bf16 v%d, v%d, v%d" % (8 + i, KB + 4 * i + j, 24 + j))
e("    s_nop 2")
VB = 32
for i in range(16):
    o = i * 1024
    so = "0" if o < 4096 else "s%d" % (30 + o // 4096)
    e("    buffer_load_dwordx4 v[%d:%d], v3, s[12:15], %s offen offset:%d nt" % (VB + 4 * i, VB + 4 * i + 3, so, o % 4096))
for sh in (8, 4, 2, 1):
    for i in range(16):
        e("    v_add_f32_dpp v%d, v%d, v%d row_ror:%d row_mask:0xf bank_mask:0xf" % (8 + i, 8 + i, 8 + i, sh))
for i in range(0, 16, 2):
    e("    v_cvt_pk_bf16_f32 v4, v%d, v%d" % (8 + i, 9 + i))
    e("    v_and_b32 v5, 0xffff0000, v4")
    e("    v_lshlrev_b32 v4, 16, v4")
    e("    v_mul_f32 v4, s34, v4")
    e("    v_mul_f32 v5, s34, v5")
    e("    v_cvt_pk_bf16_f32 v4, v4, v5")
    e("    v_and_b32 v%d, 0xffff0000, v4" % (9 + i))
    e("    v_lshlrev_b32 v%d, 16, v4" % (8 + i))
e("    v_max_f32 v28, v8, v9")
for i in range(2, 16):
    e("    v_max_f32 v28, v28, v%d" % (8 + i))
for i in range(16):
    e("    v_sub_f32 v%d, v%d, v28" % (8 + i, 8 + i))
for i in range(16):
    e("    v_mul_f32 v%d, s35, v%d" % (8 + i, 8 + i))
for i in range(16):
    e("    v_exp_f32 v%d, v%d" % (8 + i, 8 + i))
e("    v_add_f32 v29, v8, v9")
for i in range(2, 16):
    e("    v_add_f32 v29, v29, v%d" % (8 + i))
ACC = [24, 25, 26, 27, 4, 5, 6, 7]
for a in ACC:
    e("    v_mov_b32 v%d, 0" % a)
for i in range(16):
    e("    s_waitcnt vmcnt(%d)" % (15 - i))
    for j in range(4):
        w = VB + 4 * i + j
        e("    v_lshlrev_b32 v30, 16, v%d" % w)
        e("    v_and_b32 v31, 0xffff0000, v%d" % w)
        e("    v_fmac_f32 v%d, v30, v%d" % (ACC[2 * j], 8 + i))
        e("    v_fmac_f32 v%d, v31, v%d" % (ACC[2 * j + 1], 8 + i))
e("    v_lshrrev_b32 v32, 4, v0")
e("    v_lshlrev_b32 v33, 9, v32")
e("    v_and_b32 v34, 15, v0")
e("    v_lshlrev_b32 v34, 5, v34")
e("    v_add_u32 v33, v33, v34")
e("    s_barrier")
e("    ds_write_b128 v33, v[24:27]")
e("    ds_write_b128 v33, v[4:7] offset:16")
e("    v_lshlrev_b32 v35, 3, v32")
e("    ds_write_b64 v35, v[28:29] offset:8192")
e("    s_waitcnt lgkmcnt(0)")
e("    s_barrier")
e("    v_cmp_gt_u32 vcc, 128, v0")
e("    s_and_saveexec_b64 s[56:57], vcc")
e("    s_cbranch_execz L_a_done")
e("    v_mov_b32 v44, 0")
for g in range(0, 16, 2):
    e("    ds_read_b128 v[%d:%d], v44 offset:%d" % (48 + 2 * g, 51 + 2 * g, 8192 + g * 8))
e("    v_lshlrev_b32 v45, 2, v0")
for g in range(16):
    e("    ds_read_b32 v%d, v45 offset:%d" % (8 + g, g * 512))
e("    s_waitcnt lgkmcnt(0)")
e("    v_max_f32 v28, v48, v50")
for g in range(2, 16):
    e("    v_max_f32 v28, v28, v%d" % (48 + 2 * g))
for g in range(16):
    e("    v_sub_f32 v%d, v%d, v28" % (48 + 2 * g, 48 + 2 * g))
    e("    v_mul_f32 v%d, s35, v%d" % (48 + 2 * g, 48 + 2 * g))
    e("    v_exp_f32 v%d, v%d" % (48 + 2 * g, 48 + 2 * g))
e("    v_mov_b32 v29, 0")
e("    v_mov_b32 v30, 0")
for g in range(16):
    e("    v_fmac_f32 v29, v%d, v%d" % (48 + 2 * g, 49 + 2 * g))
    e("    v_fmac_f32 v30, v%d, v%d" % (48 + 2 * g, 8 + g))
e("    s_lshl_b32 s36, s2, 9")
e("    s_add_u32 s36, s36, %d" % WS_O)
e("    buffer_store_dword v30, v45, s[16:19], s36 offen")
e("    v_cmp_eq_u32 vcc, 0, v0")
e("    s_and_saveexec_b64 s[56:57], vcc")
e("    s_cbranch_execz L_a_done")
e("    s_lshl_b32 s36, s2, 3")
e("    s_add_u32 s36, s36, %d" % WS_ML)
e("    buffer_store_dwordx2 v[28:29], v44, s[16:19], s36 offen")
e("L_a_done:")
e("    s_endpgm")

e(".globl oproj_kernel")
e(".p2align 8")
e(".type oproj_kernel,@function")
e("oproj_kernel:")
e("    s_cmp_ge_u32 s2, 320")
e("    s_cbranch_scc1 L_o_done")
e("    s_cmp_ge_u32 s2, 160")
e("    s_cselect_b32 s3, 1, 0             ; which")
e("    s_mul_i32 s4, s3, 160")
e("    s_sub_u32 s20, s2, s4              ; rem")
e("    s_mul_i32 s21, s20, 205")
e("    s_lshr_b32 s21, s21, 11            ; ks")
e("    s_mul_i32 s22, s21, 10")
e("    s_sub_u32 s22, s20, s22            ; slice")
e("    s_mul_i32 s4, s3, 40")
e("    s_add_u32 s6, s0, s4")
e("    s_addc_u32 s7, s1, 0")
e("    s_load_dwordx2 s[8:9], s[6:7], 32    ; wo")
e("    s_load_dwordx2 s[12:13], s[0:1], 80  ; out")
e("    s_load_dwordx2 s[40:41], s[0:1], 88  ; debug")
e("    s_load_dwordx2 s[16:17], s[0:1], 96  ; ws")
e("    v_lshrrev_b32 v2, 7, v0            ; head-in-pair")
e("    v_and_b32 v3, 127, v0              ; d")
e("    s_lshl_b32 s23, s21, 1")
e("    v_add_u32 v4, s23, v2              ; head")
e("    v_and_b32 v112, 7, v0              ; c8")
e("    v_lshrrev_b32 v113, 3, v0          ; rg")
e("    v_mul_u32_u24 v114, 1280, v113")
e("    v_lshlrev_b32 v115, 4, v112")
e("    v_add_u32 v114, v114, v115")
e("    s_mul_i32 s24, s21, %d" % (256 * 1280))
e("    s_lshl_b32 s25, s22, 7")
e("    s_add_u32 s24, s24, s25")
e("    v_add_u32 v114, s24, v114")
for i in range(8):
    e("    s_mov_b32 s%d, %d" % (44 + i, i * 40960))
e("    s_waitcnt lgkmcnt(0)")
e("    s_mov_b32 s10, %d" % (4096 * 640 * 2))
e("    s_mov_b32 s11, 0x00020000")
e("    s_mov_b32 s14, 2560")
e("    s_mov_b32 s15, 0x00020000")
e("    s_mov_b32 s18, %d" % WS_SIZE)
e("    s_mov_b32 s19, 0x00020000")
e("    s_mov_b32 s42, 256")
e("    s_mov_b32 s43, 0x00020000")
e("    s_mov_b32 s35, %s" % f32bits(LOG2E))
for i in range(8):
    e("    buffer_load_dwordx4 v[%d:%d], v114, s[8:11], s%d offen nt" % (116 + 4 * i, 119 + 4 * i, 44 + i))
e("    s_cmp_eq_u32 s3, 1")
e("    s_cbranch_scc1 L_o_B")
for which, nsp, base in ((0, 32, 0), (1, 8, 1024)):
    if which == 1:
        e("L_o_B:")
    e("    v_mul_u32_u24 v5, %d, v4" % nsp)
    e("    v_lshlrev_b32 v6, 3, v5")
    e("    v_lshlrev_b32 v7, 9, v5")
    e("    v_lshlrev_b32 v1, 2, v3")
    e("    v_add_u32 v7, v7, v1")
    e("    s_mov_b32 s24, %d" % (WS_ML + base * 8))
    e("    s_mov_b32 s25, %d" % (WS_O + base * 512))
    for s in range(0, nsp, 2):
        e("    buffer_load_dwordx4 v[%d:%d], v6, s[16:19], s24 offen offset:%d" % (16 + 2 * s, 19 + 2 * s, s * 8))
    for s in range(nsp):
        if s * 512 >= 4096 and (s * 512) % 4096 == 0:
            e("    s_add_u32 s25, s25, 4096")
        e("    buffer_load_dword v%d, v7, s[16:19], s25 offen offset:%d" % (80 + s, (s * 512) % 4096))
    e("    s_waitcnt vmcnt(%d)" % nsp)
    e("    v_max_f32 v8, v16, v18")
    for s in range(2, nsp):
        e("    v_max_f32 v8, v8, v%d" % (16 + 2 * s))
    for s in range(nsp):
        e("    v_sub_f32 v%d, v%d, v8" % (16 + 2 * s, 16 + 2 * s))
        e("    v_mul_f32 v%d, s35, v%d" % (16 + 2 * s, 16 + 2 * s))
        e("    v_exp_f32 v%d, v%d" % (16 + 2 * s, 16 + 2 * s))
    e("    v_mov_b32 v9, 0")
    e("    v_mov_b32 v10, 0")
    e("    s_waitcnt vmcnt(0)")
    for s in range(nsp):
        e("    v_fmac_f32 v9, v%d, v%d" % (16 + 2 * s, 17 + 2 * s))
        e("    v_fmac_f32 v10, v%d, v%d" % (16 + 2 * s, 80 + s))
    if which == 0:
        e("    s_branch L_o_common")
e("L_o_common:")
e("    v_rcp_f32 v9, v9")
e("    s_nop 1")
e("    v_mul_f32 v10, v10, v9")
e("    v_cvt_pk_bf16_f32 v10, v10, v10")
e("    v_lshlrev_b32 v10, 16, v10")
e("    v_lshlrev_b32 v1, 2, v0")
e("    ds_write_b32 v1, v10 offset:8192")
e("    s_waitcnt lgkmcnt(0)")
e("    s_barrier")
e("    v_lshlrev_b32 v6, 2, v113")
for i in range(8):
    e("    ds_read_b32 v%d, v6 offset:%d" % (60 + i, 8192 + i * 128))
for j in range(8):
    e("    v_mov_b32 v%d, 0" % (8 + j))
e("    s_waitcnt lgkmcnt(0)")
for i in range(8):
    for j in range(4):
        w = 116 + 4 * i + j
        e("    v_lshlrev_b32 v71, 16, v%d" % w)
        e("    v_and_b32 v72, 0xffff0000, v%d" % w)
        e("    v_fmac_f32 v%d, v71, v%d" % (8 + 2 * j, 60 + i))
        e("    v_fmac_f32 v%d, v72, v%d" % (9 + 2 * j, 60 + i))
e("    v_lshlrev_b32 v6, 8, v113")
e("    v_lshlrev_b32 v7, 5, v112")
e("    v_add_u32 v6, v6, v7")
e("    ds_write_b128 v6, v[8:11]")
e("    ds_write_b128 v6, v[12:15] offset:16")
e("    s_waitcnt lgkmcnt(0)")
e("    s_barrier")
e("    v_cmp_gt_u32 vcc, 64, v0")
e("    s_and_saveexec_b64 s[26:27], vcc")
e("    s_cbranch_execz L_o_done")
e("    v_lshlrev_b32 v6, 2, v0")
for r in range(32):
    e("    ds_read_b32 v%d, v6 offset:%d" % (16 + r, r * 256))
e("    s_waitcnt lgkmcnt(0)")
for r in range(1, 32):
    e("    v_add_f32 v16, v16, v%d" % (16 + r))
e("    s_mul_i32 s24, s3, 10")
e("    s_add_u32 s24, s24, s22            ; which*10+slice")
e("    s_lshl_b32 s25, s24, 12")
e("    s_add_u32 s25, s25, %d" % WS_OUTP)
e("    s_lshl_b32 s28, s21, 8")
e("    s_add_u32 s28, s28, s25")
e("    buffer_store_dword v16, v6, s[16:19], s28 offen sc1")
e("    s_waitcnt vmcnt(0)")
e("    v_mov_b32 v8, 1")
e("    s_lshl_b32 s29, s24, 2")
e("    v_mov_b32 v9, s29")
e("    v_cmp_eq_u32 vcc, 0, v0")
e("    s_and_saveexec_b64 s[30:31], vcc")
e("    buffer_atomic_add v8, v9, s[40:43], 0 offen sc0 sc1")
e("    s_waitcnt vmcnt(0)")
e("    s_mov_b64 exec, s[30:31]")
e("    v_readfirstlane_b32 s29, v8")
e("    s_cmp_lg_u32 s29, 15")
e("    s_cbranch_scc1 L_o_done")
for k in range(16):
    e("    buffer_load_dword v%d, v6, s[16:19], s25 offen offset:%d sc1" % (16 + k, k * 256))
e("    s_waitcnt vmcnt(0)")
for k in range(1, 16):
    e("    v_add_f32 v16, v16, v%d" % (16 + k))
e("    v_cvt_pk_bf16_f32 v16, v16, v16")
e("    s_mul_i32 s24, s3, 1280")
e("    s_lshl_b32 s28, s22, 7")
e("    s_add_u32 s24, s24, s28")
e("    v_lshlrev_b32 v7, 1, v0")
e("    buffer_store_short v16, v7, s[12:15], s24 offen")
e("L_o_done:")
e("    s_endpgm")

e('.section .rodata,"a"')
for k, nv in (("attn_kernel", 96), ("oproj_kernel", 148)):
    e(".p2align 6")
    e(".amdhsa_kernel %s" % k)
    e("  .amdhsa_next_free_vgpr %d" % nv)
    e("  .amdhsa_next_free_sgpr 64")
    e("  .amdhsa_accum_offset %d" % nv)
    e("  .amdhsa_group_segment_fixed_size 0")
    e("  .amdhsa_kernarg_size 104")
    e("  .amdhsa_user_sgpr_count 2")
    e("  .amdhsa_user_sgpr_kernarg_segment_ptr 1")
    e("  .amdhsa_system_sgpr_workgroup_id_x 1")
    e(".end_amdhsa_kernel")
open(OUT, "w").write("\n".join(L) + "\n")
print("wrote", OUT, len(L), "lines")
```

```python
NAME = "concat_heads__gqa_block_cached__sliding_block_cached__decode"
OUT = f"cdna_kernels/{NAME}.s"

WS_QPART = 0
WS_ML = 65536
WS_O = 65536 + 16384
WS_OUTP = WS_O + 1280 * 512
WS_SIZE = 289409536

K_BYTES = 32 * 8192 * 128 * 2

L = []
def e(s=""):
    L.append(s)

hdr = open(f"cdna_kernels/{NAME}.s.ref").read().split("\n")
for line in hdr:
    if line.startswith("; @launch"):
        break
    if line.startswith("; Override") or line.startswith("; grid=ceil"):
        continue
    e(line)
e("; @launch kernel=qproj_kernel grid=(256,1,1) block=(256,1,1) lds=8192")
e("; @launch kernel=attn_kernel grid=(1280,1,1) block=(256,1,1) lds=8448")
e("; @launch kernel=oproj_kernel grid=(320,1,1) block=(256,1,1) lds=9216")
e('.amdgcn_target "amdgcn-amd-amdhsa--gfx950"')
e(".text")

LOG2E = 1.4426950408889634
SCALE = 128 ** -0.5
import struct
def f32bits(x):
    return "0x%08x" % struct.unpack("<I", struct.pack("<f", x))[0]

e(".globl qproj_kernel")
e(".p2align 8")
e(".type qproj_kernel,@function")
e("qproj_kernel:")
e("    s_cmp_ge_u32 s2, 256")
e("    s_cbranch_scc1 L_q_done")
e("    s_lshr_b32 s3, s2, 7               ; which")
e("    s_mul_i32 s4, s3, 40")
e("    s_add_u32 s6, s0, s4")
e("    s_addc_u32 s7, s1, 0")
e("    s_load_dwordx2 s[8:9], s[6:7], 0     ; x")
e("    s_load_dwordx2 s[12:13], s[6:7], 24  ; wq")
e("    s_load_dwordx2 s[16:17], s[0:1], 96  ; ws")
e("    s_and_b32 s20, s2, 127")
e("    s_lshr_b32 s21, s20, 1             ; cs")
e("    s_and_b32 s22, s2, 1               ; half")
e("    v_and_b32 v1, 7, v0                ; c8")
e("    v_lshrrev_b32 v2, 3, v0            ; rg")
e("    s_mul_i32 s23, s22, 320")
e("    v_add_u32 v3, s23, v2              ; row0")
e("    v_lshlrev_b32 v4, 13, v3           ; row0*8192")
e("    v_lshlrev_b32 v5, 4, v1")
e("    v_add_u32 v4, v4, v5")
e("    s_lshl_b32 s24, s21, 7")
e("    v_add_u32 v4, s24, v4")
e("    v_lshlrev_b32 v5, 1, v3")
e("    s_waitcnt lgkmcnt(0)")
e("    s_mov_b32 s10, 1280")
e("    s_mov_b32 s11, 0x00020000")
e("    s_mov_b32 s14, %d" % (640 * 4096 * 2))
e("    s_mov_b32 s15, 0x00020000")
e("    s_mov_b32 s18, %d" % WS_SIZE)
e("    s_mov_b32 s19, 0x00020000")
for i in range(10):
    e("    s_mov_b32 s%d, %d" % (30 + i, i * 262144))
for i in range(10):
    e("    buffer_load_dwordx4 v[%d:%d], v4, s[12:15], s%d offen nt" % (16 + 4 * i, 19 + 4 * i, 30 + i))
for i in range(10):
    e("    buffer_load_ushort v%d, v5, s[8:11], 0 offen offset:%d" % (60 + i, 64 * i))
for j in range(8):
    e("    v_mov_b32 v%d, 0" % (8 + j))
for i in range(10):
    e("    s_waitcnt vmcnt(%d)" % (9 - i))
    e("    v_lshlrev_b32 v70, 16, v%d" % (60 + i))
    for j in range(4):
        w = 16 + 4 * i + j
        e("    v_lshlrev_b32 v71, 16, v%d" % w)
        e("    v_and_b32 v72, 0xffff0000, v%d" % w)
        e("    v_fmac_f32 v%d, v71, v70" % (8 + 2 * j))
        e("    v_fmac_f32 v%d, v72, v70" % (9 + 2 * j))
e("    v_lshlrev_b32 v6, 8, v2")
e("    v_lshlrev_b32 v7, 5, v1")
e("    v_add_u32 v6, v6, v7")
e("    ds_write_b128 v6, v[8:11]")
e("    ds_write_b128 v6, v[12:15] offset:16")
e("    s_waitcnt lgkmcnt(0)")
e("    s_barrier")
e("    v_cmp_gt_u32 vcc, 64, v0")
e("    s_and_saveexec_b64 s[26:27], vcc")
e("    s_cbranch_execz L_q_done")
e("    v_lshlrev_b32 v6, 2, v0")
for r in range(32):
    e("    ds_read_b32 v%d, v6 offset:%d" % (16 + r, r * 256))
e("    s_waitcnt lgkmcnt(0)")
for r in range(1, 32):
    e("    v_add_f32 v16, v16, v%d" % (16 + r))
e("    s_lshl_b32 s25, s3, 1")
e("    s_add_u32 s25, s25, s22")
e("    s_lshl_b32 s25, s25, 14")
e("    s_lshl_b32 s28, s21, 8")
e("    s_add_u32 s25, s25, s28")
e("    v_add_u32 v6, s25, v6")
e("    buffer_store_dword v16, v6, s[16:19], 0 offen")
e("L_q_done:")
e("    s_endpgm")

e(".globl attn_kernel")
e(".p2align 8")
e(".type attn_kernel,@function")
e("attn_kernel:")
e("    s_cmp_ge_u32 s2, 1280")
e("    s_cbranch_scc1 L_a_done")
e("    s_cmp_ge_u32 s2, 1024")
e("    s_cselect_b32 s3, 1, 0             ; which")
e("    s_mul_i32 s4, s3, 40")
e("    s_add_u32 s6, s0, s4")
e("    s_addc_u32 s7, s1, 0")
e("    s_load_dwordx4 s[8:11], s[6:7], 8")
e("    s_load_dwordx2 s[16:17], s[0:1], 96  ; ws")
e("    s_lshr_b32 s20, s2, 5              ; A head")
e("    s_and_b32 s21, s2, 31")
e("    s_lshl_b32 s21, s21, 8             ; A key0")
e("    s_sub_u32 s22, s2, 1024")
e("    s_lshr_b32 s23, s22, 3             ; B head")
e("    s_and_b32 s24, s22, 7")
e("    s_lshl_b32 s24, s24, 8")
e("    s_add_u32 s24, s24, 6144           ; B key0")
e("    s_cmp_eq_u32 s3, 1")
e("    s_cselect_b32 s20, s23, s20        ; head")
e("    s_cselect_b32 s21, s24, s21        ; key0")
e("    v_and_b32 v1, 63, v0               ; lane")
e("    v_lshrrev_b32 v2, 6, v0            ; wave")
e("    s_lshl_b32 s25, s20, 21")
e("    s_lshl_b32 s26, s21, 8")
e("    s_add_u32 s25, s25, s26")
e("    v_lshlrev_b32 v3, 4, v1")
e("    v_lshlrev_b32 v4, 14, v2           ; wave*64*256")
e("    v_add_u32 v3, v3, v4")
e("    v_add_u32 v3, s25, v3              ; voffset")
e("    v_and_b32 v5, 15, v1")
e("    v_lshlrev_b32 v5, 5, v5")
e("    s_lshl_b32 s27, s3, 15")
e("    s_lshl_b32 s28, s20, 9")
e("    s_add_u32 s27, s27, s28")
e("    v_add_u32 v5, s27, v5")
e("    s_waitcnt lgkmcnt(0)")
e("    s_mov_b32 s12, s10")
e("    s_mov_b32 s13, s11")
e("    s_mov_b32 s14, %d" % K_BYTES)
e("    s_mov_b32 s15, 0x00020000")
e("    s_mov_b32 s10, %d" % K_BYTES)
e("    s_mov_b32 s11, 0x00020000")
e("    s_mov_b32 s18, %d" % WS_SIZE)
e("    s_mov_b32 s19, 0x00020000")
e("    buffer_load_dwordx4 v[8:11], v5, s[16:19], 0 offen")
e("    buffer_load_dwordx4 v[12:15], v5, s[16:19], 0 offen offset:16")
e("    s_movk_i32 s29, 0x4000")
e("    buffer_load_dwordx4 v[16:19], v5, s[16:19], s29 offen")
e("    buffer_load_dwordx4 v[20:23], v5, s[16:19], s29 offen offset:16")
KB = 32
for i in range(16):
    o = i * 1024
    if o < 4096:
        e("    buffer_load_dwordx4 v[%d:%d], v3, s[8:11], 0 offen offset:%d nt" % (KB + 4 * i, KB + 4 * i + 3, o))
    else:
        e("    buffer_load_dwordx4 v[%d:%d], v3, s[8:11], s%d offen offset:%d nt" % (KB + 4 * i, KB + 4 * i + 3, 30 + o // 4096, o % 4096))
    if i == 0:
        for k in range(1, 4):
            e("    s_movk_i32 s%d, %d" % (30 + k, 4096 * k))
e("    s_waitcnt vmcnt(16)")
for j in range(8):
    e("    v_add_f32 v%d, v%d, v%d" % (8 + j, 8 + j, 16 + j))
for j in range(4):
    e("    v_cvt_pk_bf16_f32 v%d, v%d, v%d" % (24 + j, 8 + 2 * j, 9 + 2 * j))
VB = 96
for i in range(16):
    o = i * 1024
    if o < 4096:
        e("    buffer_load_dwordx4 v[%d:%d], v3, s[12:15], 0 offen offset:%d nt" % (VB + 4 * i, VB + 4 * i + 3, o))
    else:
        e("    buffer_load_dwordx4 v[%d:%d], v3, s[12:15], s%d offen offset:%d nt" % (VB + 4 * i, VB + 4 * i + 3, 30 + o // 4096, o % 4096))
for i in range(16):
    e("    s_waitcnt vmcnt(%d)" % (16 + 15 - i))
    e("    v_mov_b32 v%d, 0" % (8 + i))
    for j in range(4):
        e("    v_dot2c_f32_bf16 v%d, v%d, v%d" % (8 + i, KB + 4 * i + j, 24 + j))
for sh in (8, 4, 2, 1):
    for i in range(16):
        e("    v_add_f32_dpp v%d, v%d, v%d row_ror:%d row_mask:0xf bank_mask:0xf" % (8 + i, 8 + i, 8 + i, sh))
e("    s_mov_b32 s34, %s" % f32bits(SCALE))
for i in range(0, 16, 2):
    e("    v_cvt_pk_bf16_f32 v%d, v%d, v%d" % (KB + i, 8 + i, 9 + i))
    e("    v_and_b32 v%d, 0xffff0000, v%d" % (KB + i + 1, KB + i))
    e("    v_lshlrev_b32 v%d, 16, v%d" % (KB + i, KB + i))
for i in range(16):
    e("    v_mul_f32 v%d, s34, v%d" % (KB + i, KB + i))
for i in range(0, 16, 2):
    e("    v_cvt_pk_bf16_f32 v%d, v%d, v%d" % (8 + i, KB + i, KB + i + 1))
    e("    v_and_b32 v%d, 0xffff0000, v%d" % (9 + i, 8 + i))
    e("    v_lshlrev_b32 v%d, 16, v%d" % (8 + i, 8 + i))
e("    v_max_f32 v28, v8, v9")
for i in range(2, 16):
    e("    v_max_f32 v28, v28, v%d" % (8 + i))
e("    s_mov_b32 s35, %s" % f32bits(LOG2E))
for i in range(16):
    e("    v_sub_f32 v%d, v%d, v28" % (8 + i, 8 + i))
for i in range(16):
    e("    v_mul_f32 v%d, s35, v%d" % (8 + i, 8 + i))
for i in range(16):
    e("    v_exp_f32 v%d, v%d" % (8 + i, 8 + i))
e("    v_add_f32 v29, v8, v9")
for i in range(2, 16):
    e("    v_add_f32 v29, v29, v%d" % (8 + i))
for j in range(8):
    e("    v_mov_b32 v%d, 0" % (32 + j))
for i in range(16):
    e("    s_waitcnt vmcnt(%d)" % (15 - i))
    for j in range(4):
        w = VB + 4 * i + j
        e("    v_lshlrev_b32 v40, 16, v%d" % w)
        e("    v_and_b32 v41, 0xffff0000, v%d" % w)
        e("    v_fmac_f32 v%d, v40, v%d" % (32 + 2 * j, 8 + i))
        e("    v_fmac_f32 v%d, v41, v%d" % (33 + 2 * j, 8 + i))
e("    v_lshrrev_b32 v6, 4, v0")
e("    v_lshlrev_b32 v7, 9, v6")
e("    v_and_b32 v42, 15, v0")
e("    v_lshlrev_b32 v42, 5, v42")
e("    v_add_u32 v7, v7, v42")
e("    ds_write_b128 v7, v[32:35]")
e("    ds_write_b128 v7, v[36:39] offset:16")
e("    v_lshlrev_b32 v43, 3, v6")
e("    ds_write_b64 v43, v[28:29] offset:8192")
e("    s_waitcnt lgkmcnt(0)")
e("    s_barrier")
e("    v_cmp_gt_u32 vcc, 128, v0")
e("    s_and_saveexec_b64 s[26:27], vcc")
e("    s_cbranch_execz L_a_done")
e("    v_mov_b32 v44, 0")
for g in range(0, 16, 2):
    e("    ds_read_b128 v[%d:%d], v44 offset:%d" % (48 + 2 * g, 51 + 2 * g, 8192 + g * 8))
e("    v_lshlrev_b32 v45, 2, v0")
for g in range(16):
    e("    ds_read_b32 v%d, v45 offset:%d" % (8 + g, g * 512))
e("    s_waitcnt lgkmcnt(0)")
e("    v_max_f32 v28, v48, v50")
for g in range(2, 16):
    e("    v_max_f32 v28, v28, v%d" % (48 + 2 * g))
for g in range(16):
    e("    v_sub_f32 v%d, v%d, v28" % (48 + 2 * g, 48 + 2 * g))
    e("    v_mul_f32 v%d, s35, v%d" % (48 + 2 * g, 48 + 2 * g))
    e("    v_exp_f32 v%d, v%d" % (48 + 2 * g, 48 + 2 * g))
e("    v_mov_b32 v29, 0")
e("    v_mov_b32 v30, 0")
for g in range(16):
    e("    v_fmac_f32 v29, v%d, v%d" % (48 + 2 * g, 49 + 2 * g))
    e("    v_fmac_f32 v30, v%d, v%d" % (48 + 2 * g, 8 + g))
e("    s_lshl_b32 s36, s2, 9")
e("    s_add_u32 s36, s36, %d" % WS_O)
e("    buffer_store_dword v30, v45, s[16:19], s36 offen")
e("    v_cmp_eq_u32 vcc, 0, v0")
e("    s_and_saveexec_b64 s[26:27], vcc")
e("    s_cbranch_execz L_a_done")
e("    s_lshl_b32 s36, s2, 3")
e("    s_add_u32 s36, s36, %d" % WS_ML)
e("    buffer_store_dwordx2 v[28:29], v44, s[16:19], s36 offen")
e("L_a_done:")
e("    s_endpgm")

e(".globl oproj_kernel")
e(".p2align 8")
e(".type oproj_kernel,@function")
e("oproj_kernel:")
e("    s_cmp_ge_u32 s2, 320")
e("    s_cbranch_scc1 L_o_done")
e("    s_cmp_ge_u32 s2, 160")
e("    s_cselect_b32 s3, 1, 0             ; which")
e("    s_mul_i32 s4, s3, 160")
e("    s_sub_u32 s20, s2, s4              ; rem")
e("    s_mul_i32 s21, s20, 205")
e("    s_lshr_b32 s21, s21, 11            ; ks")
e("    s_mul_i32 s22, s21, 10")
e("    s_sub_u32 s22, s20, s22            ; slice")
e("    s_mul_i32 s4, s3, 40")
e("    s_add_u32 s6, s0, s4")
e("    s_addc_u32 s7, s1, 0")
e("    s_load_dwordx2 s[8:9], s[6:7], 32    ; wo")
e("    s_load_dwordx2 s[12:13], s[0:1], 80  ; out")
e("    s_load_dwordx2 s[40:41], s[0:1], 88  ; debug")
e("    s_load_dwordx2 s[16:17], s[0:1], 96  ; ws")
e("    v_lshrrev_b32 v2, 7, v0            ; head-in-pair")
e("    v_and_b32 v3, 127, v0              ; d")
e("    s_lshl_b32 s23, s21, 1")
e("    v_add_u32 v4, s23, v2              ; head")
e("    s_waitcnt lgkmcnt(0)")
e("    s_mov_b32 s10, %d" % (4096 * 640 * 2))
e("    s_mov_b32 s11, 0x00020000")
e("    s_mov_b32 s14, 2560")
e("    s_mov_b32 s15, 0x00020000")
e("    s_mov_b32 s18, %d" % WS_SIZE)
e("    s_mov_b32 s19, 0x00020000")
e("    s_mov_b32 s42, 256")
e("    s_mov_b32 s43, 0x00020000")
e("    s_mov_b32 s35, %s" % f32bits(LOG2E))
e("    s_cmp_eq_u32 s3, 1")
e("    s_cbranch_scc1 L_o_B")
for which, nsp, base in ((0, 32, 0), (1, 8, 1024)):
    if which == 1:
        e("L_o_B:")
    e("    v_mul_u32_u24 v5, %d, v4" % nsp)
    e("    v_lshlrev_b32 v6, 3, v5")
    e("    v_lshlrev_b32 v7, 9, v5")
    e("    v_lshlrev_b32 v1, 2, v3")
    e("    v_add_u32 v7, v7, v1")
    e("    s_mov_b32 s24, %d" % (WS_ML + base * 8))
    e("    s_mov_b32 s25, %d" % (WS_O + base * 512))
    for s in range(0, nsp, 2):
        e("    buffer_load_dwordx4 v[%d:%d], v6, s[16:19], s24 offen offset:%d" % (16 + 2 * s, 19 + 2 * s, s * 8))
    for s in range(nsp):
        if s * 512 < 4096:
            e("    buffer_load_dword v%d, v7, s[16:19], s25 offen offset:%d" % (80 + s, s * 512))
        else:
            if (s * 512) % 4096 == 0:
                e("    s_add_u32 s25, s25, 4096")
            e("    buffer_load_dword v%d, v7, s[16:19], s25 offen offset:%d" % (80 + s, (s * 512) % 4096))
    e("    s_waitcnt vmcnt(%d)" % nsp)
    e("    v_max_f32 v8, v16, v18")
    for s in range(2, nsp):
        e("    v_max_f32 v8, v8, v%d" % (16 + 2 * s))
    for s in range(nsp):
        e("    v_sub_f32 v%d, v%d, v8" % (16 + 2 * s, 16 + 2 * s))
        e("    v_mul_f32 v%d, s35, v%d" % (16 + 2 * s, 16 + 2 * s))
        e("    v_exp_f32 v%d, v%d" % (16 + 2 * s, 16 + 2 * s))
    e("    v_mov_b32 v9, 0")
    e("    v_mov_b32 v10, 0")
    e("    s_waitcnt vmcnt(0)")
    for s in range(nsp):
        e("    v_fmac_f32 v9, v%d, v%d" % (16 + 2 * s, 17 + 2 * s))
        e("    v_fmac_f32 v10, v%d, v%d" % (16 + 2 * s, 80 + s))
    if which == 0:
        e("    s_branch L_o_common")
e("L_o_common:")
e("    v_rcp_f32 v9, v9")
e("    s_nop 1")
e("    v_mul_f32 v10, v10, v9")
e("    v_cvt_pk_bf16_f32 v10, v10, v10")
e("    v_lshlrev_b32 v10, 16, v10")
e("    v_lshlrev_b32 v1, 2, v0")
e("    ds_write_b32 v1, v10 offset:8192")
e("    s_waitcnt lgkmcnt(0)")
e("    s_barrier")
e("    v_and_b32 v1, 7, v0                ; c8")
e("    v_lshrrev_b32 v2, 3, v0            ; rg")
e("    v_mul_u32_u24 v4, 1280, v2")
e("    v_lshlrev_b32 v5, 4, v1")
e("    v_add_u32 v4, v4, v5")
e("    s_mul_i32 s24, s21, %d" % (256 * 1280))
e("    s_lshl_b32 s25, s22, 7")
e("    s_add_u32 s24, s24, s25")
e("    v_add_u32 v4, s24, v4")
for i in range(8):
    e("    s_mov_b32 s%d, %d" % (44 + i, i * 40960))
for i in range(8):
    e("    buffer_load_dwordx4 v[%d:%d], v4, s[8:11], s%d offen nt" % (16 + 4 * i, 19 + 4 * i, 44 + i))
e("    v_lshlrev_b32 v6, 2, v2")
for i in range(8):
    e("    ds_read_b32 v%d, v6 offset:%d" % (60 + i, 8192 + i * 128))
for j in range(8):
    e("    v_mov_b32 v%d, 0" % (8 + j))
e("    s_waitcnt lgkmcnt(0)")
for i in range(8):
    e("    s_waitcnt vmcnt(%d)" % (7 - i))
    for j in range(4):
        w = 16 + 4 * i + j
        e("    v_lshlrev_b32 v71, 16, v%d" % w)
        e("    v_and_b32 v72, 0xffff0000, v%d" % w)
        e("    v_fmac_f32 v%d, v71, v%d" % (8 + 2 * j, 60 + i))
        e("    v_fmac_f32 v%d, v72, v%d" % (9 + 2 * j, 60 + i))
e("    v_lshlrev_b32 v6, 8, v2")
e("    v_lshlrev_b32 v7, 5, v1")
e("    v_add_u32 v6, v6, v7")
e("    ds_write_b128 v6, v[8:11]")
e("    ds_write_b128 v6, v[12:15] offset:16")
e("    s_waitcnt lgkmcnt(0)")
e("    s_barrier")
e("    v_cmp_gt_u32 vcc, 64, v0")
e("    s_and_saveexec_b64 s[26:27], vcc")
e("    s_cbranch_execz L_o_done")
e("    v_lshlrev_b32 v6, 2, v0")
for r in range(32):
    e("    ds_read_b32 v%d, v6 offset:%d" % (16 + r, r * 256))
e("    s_waitcnt lgkmcnt(0)")
for r in range(1, 32):
    e("    v_add_f32 v16, v16, v%d" % (16 + r))
e("    s_mul_i32 s24, s3, 10")
e("    s_add_u32 s24, s24, s22            ; which*10+slice")
e("    s_lshl_b32 s25, s24, 12")
e("    s_add_u32 s25, s25, %d" % WS_OUTP)
e("    s_lshl_b32 s28, s21, 8")
e("    s_add_u32 s28, s28, s25")
e("    buffer_store_dword v16, v6, s[16:19], s28 offen sc1")
e("    s_waitcnt vmcnt(0)")
e("    v_mov_b32 v8, 1")
e("    s_lshl_b32 s29, s24, 2")
e("    v_mov_b32 v9, s29")
e("    v_cmp_eq_u32 vcc, 0, v0")
e("    s_and_saveexec_b64 s[30:31], vcc")
e("    buffer_atomic_add v8, v9, s[40:43], 0 offen sc0")
e("    s_waitcnt vmcnt(0)")
e("    s_mov_b64 exec, s[30:31]")
e("    v_readfirstlane_b32 s29, v8")
e("    s_cmp_lg_u32 s29, 15")
e("    s_cbranch_scc1 L_o_done")
for k in range(16):
    e("    buffer_load_dword v%d, v6, s[16:19], s25 offen offset:%d sc1" % (16 + k, k * 256))
e("    s_waitcnt vmcnt(0)")
for k in range(1, 16):
    e("    v_add_f32 v16, v16, v%d" % (16 + k))
e("    v_cvt_pk_bf16_f32 v16, v16, v16")
e("    s_mul_i32 s24, s3, 1280")
e("    s_lshl_b32 s28, s22, 7")
e("    s_add_u32 s24, s24, s28")
e("    v_lshlrev_b32 v7, 1, v0")
e("    buffer_store_short v16, v7, s[12:15], s24 offen")
e("L_o_done:")
e("    s_endpgm")

e('.section .rodata,"a"')
for k, nv in (("qproj_kernel", 80), ("attn_kernel", 160), ("oproj_kernel", 112)):
    e(".p2align 6")
    e(".amdhsa_kernel %s" % k)
    e("  .amdhsa_next_free_vgpr %d" % nv)
    e("  .amdhsa_next_free_sgpr 64")
    e("  .amdhsa_accum_offset %d" % nv)
    e("  .amdhsa_group_segment_fixed_size 0")
    e("  .amdhsa_kernarg_size 104")
    e("  .amdhsa_user_sgpr_count 2")
    e("  .amdhsa_user_sgpr_kernarg_segment_ptr 1")
    e("  .amdhsa_system_sgpr_workgroup_id_x 1")
    e(".end_amdhsa_kernel")

open(OUT, "w").write("\n".join(L) + "\n")
print("wrote", OUT, len(L), "lines")
```
